```python
import torch

def _softmax(x, axis=-1):
    return torch.softmax(x, dim=axis)

def _gelu(x):
    return torch.nn.functional.gelu(x, approximate='tanh')

def _silu(x):
    return torch.nn.functional.silu(x)

def _sigmoid(x):
    return torch.sigmoid(x)

def _layernorm(x, axis=-1, eps=1e-05):
    m = x.mean(dim=axis, keepdim=True)
    v = x.var(dim=axis, keepdim=True, unbiased=False)
    return (x - m) / torch.sqrt(v + eps)

def _scatter_add(tgt, idx, src, axis=0):
    return tgt.clone().index_add_(axis, idx, src)

def _segment_sum(src, seg, n):
    out = torch.zeros((n,) + src.shape[1:], dtype=src.dtype)
    return out.index_add_(0, seg, src)

def _pad(x, pw):
    flat = tuple((v for pair in reversed(pw) for v in pair))
    return torch.nn.functional.pad(x, flat)
kernel_name = 'sequential_preLN__memory_aug_recurrent_mem_tr__swiglu_ffn__prompt'

def setup_inputs():

    _w = lambda a: (lambda t: t.to(torch.bfloat16) if t.is_floating_point() else t)(torch.as_tensor(a))

    def _A_setup():
        B, S, Dm = (1, 2048, 640)
        H, Dh = (32, 192)
        M, seg = (8, 32)
        seg = min(seg, S)
        S = S // seg * seg
        return {'x': _w((lambda *s: torch.randn(*s, dtype=torch.bfloat16) * 0.05)(B, S, Dm)), 'mem0': _w((lambda *s: torch.randn(*s, dtype=torch.bfloat16) * 0.2)(B, M, Dm)), 'Wq': _w((lambda *s: torch.randn(*s, dtype=torch.bfloat16) * 1.6)(Dm, H, Dh) * Dm ** (-0.5)), 'Wk': _w((lambda *s: torch.randn(*s, dtype=torch.bfloat16) * 1.6)(Dm, H, Dh) * Dm ** (-0.5)), 'Wv': _w((lambda *s: torch.randn(*s, dtype=torch.bfloat16) * 0.2)(Dm, H, Dh) * Dm ** (-0.5)), 'Wo': _w((lambda *s: torch.randn(*s, dtype=torch.bfloat16) * 0.2)(H, Dh, Dm) * (H * Dh) ** (-0.5)), 'seg_len': seg}
    _A_in = _A_setup()

    def _B_setup():
        B, S, D, F = (1, 2048, 640, 1536)
        return {'x': _w((lambda *s: torch.randn(*s, dtype=torch.bfloat16) * 0.05)(B, S, D)), 'w_gate': _w((lambda *s: torch.randn(*s, dtype=torch.bfloat16) * 0.05)(D, F)), 'w_up': _w((lambda *s: torch.randn(*s, dtype=torch.bfloat16) * 0.05)(D, F)), 'w_down': _w((lambda *s: torch.randn(*s, dtype=torch.bfloat16) * 0.05)(F, D))}
    _B_in = _B_setup()
    return {'A_x': _A_in['x'], 'A_mem0': _A_in['mem0'], 'A_Wq': _A_in['Wq'], 'A_Wk': _A_in['Wk'], 'A_Wv': _A_in['Wv'], 'A_Wo': _A_in['Wo'], 'A_seg_len': _A_in['seg_len'], 'B_x': _B_in['x'], 'B_w_gate': _B_in['w_gate'], 'B_w_up': _B_in['w_up'], 'B_w_down': _B_in['w_down']}

def reference(A_x, A_mem0, A_Wq, A_Wk, A_Wv, A_Wo, A_seg_len, B_x, B_w_gate, B_w_up, B_w_down):

    def _A_ref(x, mem0, Wq, Wk, Wv, Wo, seg_len):
        B, S, Dm = x.shape
        H, Dh = (Wq.shape[1], Wq.shape[2])
        M = mem0.shape[1]
        scale = Dh ** (-0.5)
        n_seg = S // seg_len
        L = M + seg_len
        idx = torch.arange(L)
        mask = (idx[:, None] < M) | (idx[:, None] >= idx[None, :])
        mem = mem0
        outs = []
        for s in range(n_seg):
            xs = x[:, s * seg_len:(s + 1) * seg_len, :].clone()
            h = torch.concatenate([mem, xs], axis=1)
            q = torch.einsum('btd,dhe->bhte', h, Wq)
            k = torch.einsum('btd,dhe->bhte', h, Wk)
            v = torch.einsum('btd,dhe->bhte', h, Wv)
            scores = torch.einsum('bhqe,bhke->bhqk', q, k) * scale
            scores = torch.where(mask[None, None], scores, -1000000000.0)
            p = _softmax(scores, axis=-1)
            o = torch.einsum('bhqk,bhke->bhqe', p, v)
            o = torch.einsum('bhte,hed->btd', o, Wo)
            mem = o[:, :M, :].clone()
            outs.append(o[:, M:, :])
        return torch.concatenate(outs, axis=1)

    def _B_ref(x, w_gate, w_up, w_down):
        g = _silu(x @ w_gate)
        u = x @ w_up
        return g * u @ w_down
    x = A_x
    h = x + _A_ref(_layernorm(x, axis=-1), A_mem0, A_Wq, A_Wk, A_Wv, A_Wo, A_seg_len)
    h2 = h + _B_ref(_layernorm(h, axis=-1), B_w_gate, B_w_up, B_w_down)
    return h2
```

```python
import sys
HDR = '''.amdgcn_target "amdgcn-amd-amdhsa--gfx950"
.text
'''
def kernel(name, body, vgpr=64, sgpr=64):
    return f'''.globl {name}
.p2align 8
.type {name},@function
{name}:
{body}
  s_endpgm
'''
def desc(name, vgpr=64, sgpr=64, lds=0):
    return f'''.section .rodata,"a"
.p2align 6
.amdhsa_kernel {name}
  .amdhsa_next_free_vgpr {vgpr}
  .amdhsa_next_free_sgpr {sgpr}
  .amdhsa_accum_offset {vgpr}
  .amdhsa_group_segment_fixed_size 0
  .amdhsa_kernarg_size 16
  .amdhsa_user_sgpr_count 2
  .amdhsa_user_sgpr_kernarg_segment_ptr 1
  .amdhsa_system_sgpr_workgroup_id_x 1
.end_amdhsa_kernel
.text
'''
def meta(names, vgpr=64, sgpr=64, maxwg=1024):
    s = '.amdgpu_metadata\n---\namdhsa.version: [1, 2]\namdhsa.kernels:\n'
    for n in names:
        s += f'''  - .name: {n}
    .symbol: {n}.kd
    .kernarg_segment_size: 16
    .kernarg_segment_align: 8
    .group_segment_fixed_size: 0
    .private_segment_fixed_size: 0
    .wavefront_size: 64
    .sgpr_count: {sgpr}
    .vgpr_count: {vgpr}
    .max_flat_workgroup_size: {maxwg}
    .args:
      - {{.name: kernargs, .size: 16, .offset: 0, .value_kind: by_value}}
'''
    s += '...\n.end_amdgpu_metadata\n'
    return s

def pp(name, a, b, sf, lf, ring, lanes, n=400, delay=0):
    L = name
    mask = (1<<lanes)-1
    poll = f'''
{L}_poll\\@:
'''
    def polltext(tag):
        return f'''
{L}_poll{tag}:
  global_load_dwordx4 v[10:13], v3, s[4:5] {lf}
  s_add_u32 s21, s21, 1
  s_cmp_gt_u32 s21, 0x40000
  s_cbranch_scc1 {L}_end
  s_waitcnt vmcnt(0)
  v_cmp_ne_u32 vcc, s20, v10
  v_cmp_ne_u32 s[24:25], s20, v13
  s_or_b64 vcc, vcc, s[24:25]
  s_cbranch_vccnz {L}_poll{tag}
'''
    def storetext():
        return f'''
  v_mov_b32 v4, s20
  v_mov_b32 v5, s20
  v_mov_b32 v6, s20
  v_mov_b32 v7, s20
  global_store_dwordx4 v2, v[4:7], s[4:5] {sf}
'''
    def adv():
        if ring >= n:
            return f'''
  v_add_u32 v2, 0x400, v2
  v_add_u32 v3, 0x400, v3
'''
        else:
            return f'''
  s_add_u32 s22, s20, 1
  s_and_b32 s22, s22, {ring-1}
  s_lshl_b32 s22, s22, 10
  v_add_u32 v2, s22, v8
  v_add_u32 v3, s22, v9
'''
    body = f'''
  s_load_dwordx4 s[4:7], s[0:1], 0
  s_cmp_eq_u32 s2, {a}
  s_cbranch_scc1 {L}_go
  s_cmp_eq_u32 s2, {b}
  s_cbranch_scc0 {L}_done
{L}_go:
  s_mov_b32 exec_lo, {mask & 0xffffffff}
  s_mov_b32 exec_hi, {mask >> 32}
  s_waitcnt lgkmcnt(0)
  v_lshlrev_b32 v1, 4, v0
  s_mov_b32 s20, 0
  s_mov_b32 s21, 0
  s_mov_b32 s26, 0
  s_mov_b32 s27, 0
  s_cmp_eq_u32 s2, {a}
  s_cbranch_scc0 {L}_roleb
  v_mov_b32 v8, v1
  v_add_u32 v9, {max(ring,1)*1024}, v1
  v_mov_b32 v2, v8
  v_mov_b32 v3, v9
{L}_loopa:
  s_cmp_eq_u32 s20, {n//2}
  s_cbranch_scc0 {L}_nt
  s_memtime s[26:27]
  s_waitcnt lgkmcnt(0)
{L}_nt:
  {storetext()}
  {polltext('a')}
  {adv()}
  s_add_u32 s20, s20, 1
  s_cmp_lt_u32 s20, {n}
  s_cbranch_scc1 {L}_loopa
  s_memtime s[28:29]
  s_waitcnt lgkmcnt(0)
  s_sub_u32 s28, s28, s26
  v_mov_b32 v4, s28
  v_mov_b32 v5, s21
  v_mov_b32 v6, 0
  s_mov_b64 exec, 1
  global_store_dwordx2 v6, v[4:5], s[6:7]
  s_branch {L}_done
{L}_roleb:
  v_mov_b32 v9, v1
  v_add_u32 v8, {max(ring,1)*1024}, v1
  v_mov_b32 v2, v8
  v_mov_b32 v3, v9
{L}_loopb:
  {polltext('b')}
  {storetext()}
  {adv()}
  s_add_u32 s20, s20, 1
  s_cmp_lt_u32 s20, {n}
  s_cbranch_scc1 {L}_loopb
  v_mov_b32 v4, s21
  v_mov_b32 v6, 8
  s_mov_b64 exec, 1
  global_store_dword v6, v4, s[6:7]
  s_branch {L}_done
{L}_end:
  v_mov_b32 v4, 0xdead
  v_mov_b32 v6, 12
  s_mov_b64 exec, 1
  global_store_dword v6, v4, s[6:7]
{L}_done:
'''
    return body

if __name__ == '__main__':
    names=[]; out=HDR; descs=''
    cfgs=[]
    for (a,b,pn) in [(0,8,'same'),(0,1,'x01'),(0,4,'x04')]:
        for ring in [400,4]:
            for lanes in [1,64]:
                fl = [('sc1','sc1')]
                if pn=='same': fl += [('','sc1'),('','nt'),('','sc0 sc1'),('nt','nt'),('sc0','sc1')]
                for sf,lf in fl:
                    nm = f'pp_{pn}_r{ring}_l{lanes}_s{sf.replace(" ","")}_l{lf.replace(" ","")}'
                    names.append(nm)
                    out += kernel(nm, pp(nm,a,b,sf,lf,ring,lanes))
                    descs += desc(nm)
    open('pp3.s','w').write(out+descs+meta(names))
    open('pp3.list','w').write('\n'.join(names)+'\n')
```

```python
from gen_pp import HDR, kernel, desc, meta
def body(name, N, S):
    return f'''
  s_load_dwordx4 s[4:7], s[0:1], 0
  s_cmp_lt_u32 s2, 8
  s_cbranch_scc0 {name}_done
  s_getreg_b32 s30, hwreg(HW_REG_XCC_ID)
  s_and_b32 s30, s30, 7
  s_waitcnt lgkmcnt(0)
  s_mov_b64 exec, 1
  s_mov_b32 s20, 0
  v_mov_b32 v1, 0
{name}_l:
  s_memtime s[40:41]
  s_waitcnt lgkmcnt(0)
  global_load_dword v2, v1, s[4:5] sc1
  s_waitcnt vmcnt(0)
  s_memtime s[42:43]
  s_waitcnt lgkmcnt(0)
  s_sub_u32 s44, s42, s40
  v_mov_b32 v3, s44
  s_mul_i32 s45, s30, {N*4}
  s_lshl_b32 s46, s20, 2
  s_add_u32 s45, s45, s46
  v_mov_b32 v4, s45
  global_store_dword v4, v3, s[6:7]
  v_add_u32 v1, {S}, v1
  s_add_u32 s20, s20, 1
  s_cmp_lt_u32 s20, {N}
  s_cbranch_scc1 {name}_l
  s_waitcnt vmcnt(0)
{name}_done:
'''
names=['map256','map4k','map64k']
out=HDR+kernel('map256',body('map256',512,256))+kernel('map4k',body('map4k',512,4096))+kernel('map64k',body('map64k',512,65536))
out+=''.join(desc(n) for n in names)+meta(names)
open('map.s','w').write(out)
```
